```python
import torch

def _softmax(x, axis=-1):
    return torch.softmax(x, dim=axis)
def _gelu(x):
    return torch.nn.functional.gelu(x, approximate="tanh")
def _silu(x):
    return torch.nn.functional.silu(x)
def _sigmoid(x):
    return torch.sigmoid(x)
def _layernorm(x, axis=-1, eps=1e-5):
    m = x.mean(dim=axis, keepdim=True)
    v = x.var(dim=axis, keepdim=True, unbiased=False)
    return (x - m) / torch.sqrt(v + eps)
def _scatter_add(tgt, idx, src, axis=0):
    return tgt.clone().index_add_(axis, idx, src)
def _segment_sum(src, seg, n):
    out = torch.zeros((n,) + src.shape[1:], dtype=src.dtype)
    return out.index_add_(0, seg, src)
def _pad(x, pw):
    flat = tuple(v for pair in reversed(pw) for v in pair)
    return torch.nn.functional.pad(x, flat)

kernel_name = 'standalone__gqa_softmax__sampling'

def setup_inputs():

    _w = (lambda a: (lambda t: t.to(torch.bfloat16) if t.is_floating_point() else t)(torch.as_tensor(a)))
    B, Hq, Hkv, Sq, Sk, D = 8, 32, 32, 16, 2048, 128
    return {
        "q": _w((lambda *s: torch.randn(*s, dtype=torch.bfloat16) * 0.8)(B, Hq, Sq, D)),
        "k": _w((lambda *s: torch.randn(*s, dtype=torch.bfloat16) * 0.8)(B, Hkv, Sk, D)),
        "v": _w((lambda *s: torch.randn(*s, dtype=torch.bfloat16) * 0.05)(B, Hkv, Sk, D)),
    }

def reference(q, k, v):
    B, Hq, Sq, D = q.shape
    Hkv = k.shape[1]
    rep = Hq // Hkv
    k = (lambda x, n, axis: torch.repeat_interleave(x, n, dim=axis))(k, rep, axis=1)
    v = (lambda x, n, axis: torch.repeat_interleave(x, n, dim=axis))(v, rep, axis=1)
    scale = D ** -0.5
    scores = torch.einsum("bhqd,bhkd->bhqk", q, k) * scale
    p = _softmax(scores, axis=-1)
    return torch.einsum("bhqk,bhkd->bhqd", p, v)
```

```python
import argparse
import struct

NAME = "standalone__gqa_softmax__sampling"

HEADER = """; Kernarg layout for this problem (48 bytes, ptrs only, base s[0:1]):
"""


def f32bits(x):
    return struct.unpack("<I", struct.pack("<f", x))[0]


class Asm:
    def __init__(self):
        self.lines = []

    def __call__(self, s):
        self.lines.append("    " + s)

    def label(self, s):
        self.lines.append(s + ":")

    def c(self, s):
        self.lines.append("    ; " + s)

    def text(self):
        return "\n".join(self.lines) + "\n"


def vr(a, n):
    return f"v[{a}:{a + n - 1}]" if n > 1 else f"v{a}"


def gen(pol="nt", inter=True, stamp=False, stagger=0):
    a = Asm()
    NW = 4
    WREG = 36864
    QOFF = 32768
    NT = 16
    LDS = NW * WREG
    pol = (" " + pol) if pol else ""
    if inter:
        WOFF, TSTEP = 8192, 8192 * NW
    else:
        WOFF, TSTEP = 8192 * NT, 8192
    SK, SV, SQ, SO = 12, 16, 20, 24
    s_off, s_off2, s_it, s_wb, s_c, s_w, s_t = 28, 29, 30, 31, 32, 33, 34
    s_stamp = 40
    v_lane, v_g, v_i = 1, 2, 3
    voffK = 4
    voffV = 8
    kaddr = 10
    vaddr = 14
    v_m, v_mc, v_al, v_t0, v_t1 = 22, 23, 24, 26, 27
    qf = 28
    ones = 44
    S = 48
    P = 56
    lacc = 60
    O = 64
    kf = 96
    vf = 128
    NV = 160

    C = (128 ** -0.5) * 1.4426950408889634

    def dma_tile(srd, voff, nv, ldsoff, soffs):
        for half in range(2):
            a(f"s_add_u32 m0, s{s_wb}, {ldsoff + half * 4096}")
            for jj in range(4):
                if jj == 0:
                    a("s_nop 0")
                a(f"buffer_load_dwordx4 v{voff + (jj % nv)}, s[{srd}:{srd + 3}], s{soffs[half]} offen offset:{jj * 1024}{pol} lds")

    a(f"s_cmp_ge_u32 s2, 256")
    a(f"s_cbranch_scc1 L_end")
    a(f"s_load_dwordx8 s[4:11], s[0:1], 0")
    if stamp:
        a(f"s_load_dwordx2 s[44:45], s[0:1], 40")
        a(f"s_memrealtime s[{s_stamp}:{s_stamp+1}]")
    a(f"v_lshrrev_b32 v{v_t0}, 6, v0")
    a(f"v_and_b32 v{v_lane}, 63, v0")
    a(f"v_readfirstlane_b32 s{s_w}, v{v_t0}")
    a(f"v_lshrrev_b32 v{v_g}, 4, v{v_lane}")
    a(f"v_and_b32 v{v_i}, 15, v{v_lane}")
    a(f"s_mul_i32 s{s_wb}, s{s_w}, {WREG}")
    a(f"s_mul_i32 s{s_off}, s{s_w}, {WOFF}")
    if stagger:
        a(f"s_mul_i32 s{s_t}, s2, {stagger}")
        a(f"s_and_b32 s{s_t}, s{s_t}, {NT - 1}")
        a(f"s_mul_i32 s{s_t}, s{s_t}, {TSTEP}")
        a(f"s_add_u32 s{s_off}, s{s_off}, s{s_t}")
    a(f"s_add_u32 s{s_off2}, s{s_off}, 4096")
    a(f"v_xor_b32 v{v_t0}, v{v_i}, v{v_g}")
    a(f"v_lshlrev_b32 v{v_t0}, 4, v{v_t0}")
    a(f"v_lshl_add_u32 v{voffK}, v{v_g}, 8, v{v_t0}")
    for jj in range(1, 4):
        a(f"v_xor_b32 v{voffK + jj}, {64 * jj}, v{voffK}")
    a(f"v_lshlrev_b32 v{v_t1}, 1, v{v_g}")
    a(f"v_xor_b32 v{v_t1}, v{v_i}, v{v_t1}")
    a(f"v_lshlrev_b32 v{v_t1}, 4, v{v_t1}")
    a(f"v_lshl_add_u32 v{voffV}, v{v_g}, 8, v{v_t1}")
    a(f"v_xor_b32 v{voffV + 1}, 128, v{voffV}")
    a(f"s_lshl_b32 s{s_t}, s2, 19")
    a(f"s_lshl_b32 s3, s2, 12")
    a(f"s_mov_b32 s{SK + 2}, 524288")
    a(f"s_mov_b32 s{SK + 3}, 0x20000")
    a(f"s_mov_b32 s{SV + 2}, 524288")
    a(f"s_mov_b32 s{SV + 3}, 0x20000")
    a(f"s_mov_b32 s{SQ + 2}, 4096")
    a(f"s_mov_b32 s{SQ + 3}, 0x20000")
    a(f"s_mov_b32 s{SO + 2}, 4096")
    a(f"s_mov_b32 s{SO + 3}, 0x20000")
    a(f"s_waitcnt lgkmcnt(0)")
    a(f"s_add_u32 s{SK}, s6, s{s_t}")
    a(f"s_addc_u32 s{SK + 1}, s7, 0")
    a(f"s_add_u32 s{SQ}, s4, s3")
    a(f"s_addc_u32 s{SQ + 1}, s5, 0")
    a(f"s_add_u32 s{SV}, s8, s{s_t}")
    a(f"s_addc_u32 s{SV + 1}, s9, 0")
    a(f"s_add_u32 m0, s{s_wb}, {QOFF}")
    a(f"s_add_u32 s{SO}, s10, s3")
    a(f"s_addc_u32 s{SO + 1}, s11, 0")
    for jj in range(4):
        a(f"buffer_load_dwordx4 v{voffK + jj}, s[{SQ}:{SQ + 3}], 0 offen offset:{jj * 1024} lds")

    def advance():
        if stagger:
            a(f"s_add_u32 s{s_off}, s{s_off}, {TSTEP}")
            if inter:
                a(f"s_and_b32 s{s_off}, s{s_off}, {524288 - 1}")
            else:
                raise NotImplementedError
            a(f"s_add_u32 s{s_off2}, s{s_off}, 4096")
        else:
            a(f"s_add_u32 s{s_off}, s{s_off}, {TSTEP}")
            a(f"s_add_u32 s{s_off2}, s{s_off2}, {TSTEP}")

    for p in range(2):
        dma_tile(SK, voffK, 4, p * 16384, (s_off, s_off2))
        dma_tile(SV, voffV, 2, p * 16384 + 8192, (s_off, s_off2))
        advance()
    a(f"v_lshl_add_u32 v{kaddr}, v{v_i}, 8, v{v_t0}")
    a(f"v_add_u32 v{kaddr}, s{s_wb}, v{kaddr}")
    for m in range(1, 4):
        a(f"v_xor_b32 v{kaddr + m}, {64 * m}, v{kaddr}")
    a(f"v_lshrrev_b32 v{v_t0}, 2, v{v_lane}")
    a(f"v_and_b32 v{v_t1}, 7, v{v_t0}")
    a(f"v_lshlrev_b32 v{v_t1}, 5, v{v_t1}")
    a(f"v_lshl_add_u32 v{v_t1}, v{v_t0}, 8, v{v_t1}")
    a(f"v_and_b32 v{v_t0}, 3, v{v_lane}")
    a(f"v_lshl_add_u32 v{v_t1}, v{v_t0}, 3, v{v_t1}")
    a(f"v_add_u32 v{vaddr}, s{s_wb}, v{v_t1}")
    a(f"v_add_u32 v{vaddr}, 8192, v{vaddr}")
    for db in range(1, 8):
        a(f"v_xor_b32 v{vaddr + db}, {32 * db}, v{vaddr}")
    for r in range(4):
        a(f"v_mov_b32 v{ones + r}, 0x3f803f80")
        a(f"v_mov_b32 v{lacc + r}, 0")
    for r in range(32):
        a(f"v_mov_b32 v{O + r}, 0")
    a(f"v_mov_b32 v{v_m}, 0xff800000")
    a(f"s_mov_b32 s{s_c}, {hex(f32bits(C))}")
    a(f"s_mov_b32 s{s_it}, 0")
    a(f"s_waitcnt vmcnt(32)")
    for m in range(4):
        a(f"ds_read_b128 {vr(qf + 4 * m, 4)}, v{kaddr + m} offset:{QOFF}")

    a.label("L_loop")
    for p in range(2):
        a.c(f"---- tile slot {p}")
        a(f"s_waitcnt vmcnt(24)")
        if p == 1:
            a(f"s_cmp_lt_u32 s{s_it}, {NT // 2 - 1}")
            a(f"s_cbranch_scc1 L_wk{p}")
            a(f"s_waitcnt vmcnt(8)")
            a.label(f"L_wk{p}")
        for h in range(2):
            for m in range(4):
                a(f"ds_read_b128 {vr(kf + 16 * h + 4 * m, 4)}, v{kaddr + m} offset:{p * 16384 + h * 4096}")
        a(f"s_waitcnt lgkmcnt(0)")
        a(f"s_cmp_lt_u32 s{s_it}, {NT // 2 - 1}")
        a(f"s_cbranch_scc0 L_nk{p}")
        dma_tile(SK, voffK, 4, p * 16384, (s_off, s_off2))
        a.label(f"L_nk{p}")
        for m in range(4):
            for h in range(2):
                src = "0" if m == 0 else vr(S + 4 * h, 4)
                a(f"v_mfma_f32_16x16x32_bf16 {vr(S + 4 * h, 4)}, {vr(kf + 16 * h + 4 * m, 4)}, {vr(qf + 4 * m, 4)}, {src}")
        a("s_nop 7")
        a(f"v_max3_f32 v{v_t0}, v{S}, v{S + 1}, v{S + 2}")
        a(f"v_max3_f32 v{v_t1}, v{S + 3}, v{S + 4}, v{S + 5}")
        a(f"v_max3_f32 v{v_t0}, v{v_t0}, v{S + 6}, v{S + 7}")
        a(f"v_max3_f32 v{v_t0}, v{v_t0}, v{v_t1}, v{v_m}")
        a(f"v_mov_b32 v{v_t1}, v{v_t0}")
        a("s_nop 1")
        a(f"v_permlane32_swap_b32 v{v_t1}, v{v_t0}")
        a("s_nop 1")
        a(f"v_max_f32 v{v_t0}, v{v_t0}, v{v_t1}")
        a(f"v_mov_b32 v{v_t1}, v{v_t0}")
        a("s_nop 1")
        a(f"v_permlane16_swap_b32 v{v_t1}, v{v_t0}")
        a("s_nop 1")
        a(f"v_max_f32 v{v_t0}, v{v_t0}, v{v_t1}")
        a(f"v_sub_f32 v{v_al}, v{v_m}, v{v_t0}")
        a(f"v_mul_f32 v{v_mc}, s{s_c}, v{v_t0}")
        a(f"v_mul_f32 v{v_al}, s{s_c}, v{v_al}")
        a(f"v_mov_b32 v{v_m}, v{v_t0}")
        a(f"v_exp_f32 v{v_al}, v{v_al}")
        for r in range(8):
            a(f"v_fma_f32 v{S + r}, v{S + r}, s{s_c}, -v{v_mc}")
        for r in range(8):
            a(f"v_exp_f32 v{S + r}, v{S + r}")
        a(f"v_mul_f32 v{lacc}, v{v_al}, v{lacc}")
        for r in range(4):
            a(f"v_cvt_pk_bf16_f32 v{P + r}, v{S + 2 * r}, v{S + 2 * r + 1}")
        for r in range(16):
            a(f"v_pk_mul_f32 {vr(O + 2 * r, 2)}, {vr(O + 2 * r, 2)}, {vr(v_al, 2)} op_sel_hi:[1,0]")
        a(f"s_waitcnt vmcnt(24)")
        a(f"s_cmp_lt_u32 s{s_it}, {NT // 2 - 1}")
        a(f"s_cbranch_scc1 L_wv{p}")
        a(f"s_waitcnt vmcnt({16 if p == 0 else 0})")
        a.label(f"L_wv{p}")
        for db in range(8):
            for h in range(2):
                a(f"ds_read_b64_tr_b16 {vr(vf + 4 * db + 2 * h, 2)}, v{vaddr + db} offset:{p * 16384 + h * 4096}")
        a(f"v_mfma_f32_16x16x32_bf16 {vr(lacc, 4)}, {vr(ones, 4)}, {vr(P, 4)}, {vr(lacc, 4)}")
        a(f"s_waitcnt lgkmcnt(0)")
        a(f"s_cbranch_scc0 L_nv{p}")
        dma_tile(SV, voffV, 2, p * 16384 + 8192, (s_off, s_off2))
        advance()
        a.label(f"L_nv{p}")
        for db in range(8):
            a(f"v_mfma_f32_16x16x32_bf16 {vr(O + 4 * db, 4)}, {vr(vf + 4 * db, 4)}, {vr(P, 4)}, {vr(O + 4 * db, 4)}")
    a(f"s_add_u32 s{s_it}, s{s_it}, 1")
    a(f"s_cmp_lt_u32 s{s_it}, {NT // 2}")
    a(f"s_cbranch_scc1 L_loop")

    if stamp:
        a(f"s_memrealtime s[{s_stamp+2}:{s_stamp+3}]")
    RS = 528
    MLOFF = 16 * RS
    v_wa, v_ra0, v_ra1, v_ml0, v_ml1 = 4, 5, 6, 7, 8
    a(f"v_mul_u32_u24 v{v_wa}, {RS}, v{v_i}")
    a(f"v_lshl_add_u32 v{v_wa}, v{v_g}, 4, v{v_wa}")
    a(f"v_add_u32 v{v_wa}, s{s_wb}, v{v_wa}")
    a(f"v_lshlrev_b32 v{v_t0}, 3, v{v_i}")
    a(f"v_add_u32 v{v_t0}, s{s_wb}, v{v_t0}")
    a(f"s_lshl_b32 s{s_t}, s{s_w}, 2")
    a(f"v_add_u32 v{v_t1}, s{s_t}, v{v_g}")
    a(f"v_mul_u32_u24 v{v_ra0}, {RS}, v{v_t1}")
    a(f"v_lshl_add_u32 v{v_ra0}, v{v_i}, 5, v{v_ra0}")
    a(f"v_add_u32 v{v_ra1}, {2 * WREG}, v{v_ra0}")
    a(f"v_lshlrev_b32 v{v_ml0}, 3, v{v_t1}")
    a(f"v_add_u32 v{v_ml1}, {2 * WREG}, v{v_ml0}")
    a(f"v_mov_b32 v{v_m + 1}, v{lacc}")
    a(f"ds_write_b64 v{v_t0}, {vr(v_m, 2)} offset:{MLOFF}")
    for db in range(8):
        a(f"ds_write_b128 v{v_wa}, {vr(O + 4 * db, 4)} offset:{64 * db}")
    a("s_waitcnt lgkmcnt(0)")
    a("s_barrier")
    ML = 28
    PO = 64
    for w in range(4):
        ra = v_ml0 if w < 2 else v_ml1
        a(f"ds_read_b64 {vr(ML + 2 * w, 2)}, v{ra} offset:{MLOFF + (w & 1) * WREG}")
    for w in range(4):
        ra = v_ra0 if w < 2 else v_ra1
        for hh in range(2):
            a(f"ds_read_b128 {vr(PO + 8 * w + 4 * hh, 4)}, v{ra} offset:{(w & 1) * WREG + 16 * hh}")
    a("s_waitcnt lgkmcnt(8)")
    a(f"v_max3_f32 v{v_t0}, v{ML}, v{ML + 2}, v{ML + 4}")
    a(f"v_max_f32 v{v_t0}, v{v_t0}, v{ML + 6}")
    F = 40
    for w in range(4):
        a(f"v_sub_f32 v{F + w}, v{ML + 2 * w}, v{v_t0}")
    for w in range(4):
        a(f"v_mul_f32 v{F + w}, s{s_c}, v{F + w}")
    for w in range(4):
        a(f"v_exp_f32 v{F + w}, v{F + w}")
    a("s_nop 0")
    a(f"v_mul_f32 v{v_t1}, v{F}, v{ML + 1}")
    for w in range(1, 4):
        a(f"v_fma_f32 v{v_t1}, v{F + w}, v{ML + 2 * w + 1}, v{v_t1}")
    a(f"v_rcp_f32 v{v_t1}, v{v_t1}")
    a("s_nop 0")
    for w in range(4):
        a(f"v_mul_f32 v{F + w}, v{F + w}, v{v_t1}")
    a("s_waitcnt lgkmcnt(0)")
    R = 48
    for e in range(8):
        a(f"v_mul_f32 v{R + e}, v{F}, v{PO + e}")
    for w in range(1, 4):
        for e in range(8):
            a(f"v_fma_f32 v{R + e}, v{F + w}, v{PO + 8 * w + e}, v{R + e}")
    for e in range(4):
        a(f"v_cvt_pk_bf16_f32 v{56 + e}, v{R + 2 * e}, v{R + 2 * e + 1}")
    a(f"v_lshlrev_b32 v{v_t0}, 4, v0")
    a(f"buffer_store_dwordx4 {vr(56, 4)}, v{v_t0}, s[{SO}:{SO + 3}], 0 offen")
    if stamp:
        a("s_waitcnt vmcnt(0)")
        a(f"s_memrealtime s[{s_stamp+6}:{s_stamp+7}]")
        a(f"s_getreg_b32 s50, hwreg(HW_REG_XCC_ID)")
        a(f"s_getreg_b32 s51, hwreg(HW_REG_HW_ID)")
        a("s_waitcnt lgkmcnt(0)")
        a(f"s_mov_b32 s52, s44")
        a(f"s_mov_b32 s53, s45")
        a(f"s_mov_b32 s54, 0x100000")
        a(f"s_mov_b32 s55, 0x20000")
        a(f"v_mov_b32 v56, s{s_stamp}")
        a(f"v_mov_b32 v57, s{s_stamp+2}")
        a(f"v_mov_b32 v58, s{s_stamp+6}")
        a(f"s_lshl_b32 s51, s51, 4")
        a(f"s_and_b32 s50, s50, 15")
        a(f"s_or_b32 s50, s50, s51")
        a(f"v_mov_b32 v59, s50")
        a(f"s_lshl_b32 s{s_t}, s2, 2")
        a(f"s_add_u32 s{s_t}, s{s_t}, s{s_w}")
        a(f"s_lshl_b32 s{s_t}, s{s_t}, 4")
        a(f"v_mov_b32 v60, s{s_t}")
        a(f"buffer_store_dwordx4 {vr(56, 4)}, v60, s[52:55], 0 offen")
    a.label("L_end")
    a("s_endpgm")

    out = HEADER
    out += f"; @launch grid=(256,1,1) block=({NW * 64},1,1) lds={LDS}\n"
    out += f""".amdgcn_target "amdgcn-amd-amdhsa--gfx950"
.text
.globl {NAME}_kernel
.p2align 8
.type {NAME}_kernel,@function
{NAME}_kernel:
"""
    out += a.text()
    out += f""".section .rodata,"a"
.p2align 6
.amdhsa_kernel {NAME}_kernel
  .amdhsa_next_free_vgpr {NV}
  .amdhsa_next_free_sgpr 64
  .amdhsa_accum_offset {NV}
  .amdhsa_group_segment_fixed_size 0
  .amdhsa_kernarg_size 48
  .amdhsa_user_sgpr_count 2
  .amdhsa_user_sgpr_kernarg_segment_ptr 1
  .amdhsa_system_sgpr_workgroup_id_x 1
  .amdhsa_float_denorm_mode_32 3
.end_amdhsa_kernel
"""
    return out


if __name__ == "__main__":
    ap = argparse.ArgumentParser()
    ap.add_argument("-o", default="/dev/stdout")
    ap.add_argument("--pol", default="nt")
    ap.add_argument("--blocked", action="store_true")
    ap.add_argument("--stamp", action="store_true")
    ap.add_argument("--stagger", type=int, default=0)
    args = ap.parse_args()
    open(args.o, "w").write(gen(pol=args.pol, inter=not args.blocked, stamp=args.stamp, stagger=args.stagger))
```
